```python
import torch

def _softmax(x, axis=-1):
    return torch.softmax(x, dim=axis)
def _gelu(x):
    return torch.nn.functional.gelu(x, approximate="tanh")
def _silu(x):
    return torch.nn.functional.silu(x)
def _sigmoid(x):
    return torch.sigmoid(x)
def _layernorm(x, axis=-1, eps=1e-5):
    m = x.mean(dim=axis, keepdim=True)
    v = x.var(dim=axis, keepdim=True, unbiased=False)
    return (x - m) / torch.sqrt(v + eps)
def _scatter_add(tgt, idx, src, axis=0):
    return tgt.clone().index_add_(axis, idx, src)
def _segment_sum(src, seg, n):
    out = torch.zeros((n,) + src.shape[1:], dtype=src.dtype)
    return out.index_add_(0, seg, src)
def _pad(x, pw):
    flat = tuple(v for pair in reversed(pw) for v in pair)
    return torch.nn.functional.pad(x, flat)

kernel_name = 'standalone__cheap_equivariant_egnn__graph'

def setup_inputs():

    _w = (lambda a: (lambda t: t.to(torch.bfloat16) if t.is_floating_point() else t)(torch.as_tensor(a)))
    N, deg, D, De = 50000, 16, 64, max(16, 1)
    E = N * deg
    return {
        "h": _w((lambda *s: torch.randn(*s, dtype=torch.bfloat16) * 0.2)(N, D)),
        "pos": _w((lambda *s: torch.randn(*s, dtype=torch.bfloat16) * 0.8)(N, 3)),
        "e_attr": _w((lambda *s: torch.randn(*s, dtype=torch.bfloat16) * 0.8)(E, De)),
        "src": _w((lambda lo, hi, *s: torch.randint(lo, hi, s))(0, N, E).to(torch.int64)),
        "dst": _w((lambda lo, hi, *s: torch.randint(lo, hi, s))(0, N, E).to(torch.int64)),
        "w_e": _w(0.1 * (lambda *s: torch.randn(*s, dtype=torch.bfloat16) * 0.8)(2 * D + 1 + De, D)),
        "w_x": _w(0.1 * (lambda *s: torch.randn(*s, dtype=torch.bfloat16) * 0.2)(D, 1)),
        "w_h": _w(0.1 * (lambda *s: torch.randn(*s, dtype=torch.bfloat16) * 0.2)(2 * D, D)),
    }

def reference(h, pos, e_attr, src, dst, w_e, w_x, w_h):
    N, D = h.shape[0], h.shape[1]
    diff = pos[dst] - pos[src]
    dist2 = torch.sum(diff * diff, axis=-1, keepdims=True)
    e_in = torch.concatenate([h[dst], h[src], dist2, e_attr], axis=-1)
    m_ij = _silu(e_in @ w_e)
    coord_scale = m_ij @ w_x
    pos_new = pos + _segment_sum(diff * coord_scale, dst, N)
    m_i = _segment_sum(m_ij, dst, N)
    h_new = h + _silu(torch.concatenate([h, m_i], axis=-1) @ w_h)
    return h_new, pos_new
```

```python
import re
TRANS = ('v_exp_f32','v_rcp_f32','v_log_f32','v_rsq_f32','v_sqrt_f32')
def regs_of(tok):
    tok = tok.strip()
    out = set()
    m = re.fullmatch(r'-?\|?([vs])\[(\d+):(\d+)\]\|?', tok)
    if m:
        return {(m.group(1), i) for i in range(int(m.group(2)), int(m.group(3))+1)}
    m = re.fullmatch(r'-?\|?([vs])(\d+)\|?', tok)
    if m: return {(m.group(1), int(m.group(2)))}
    if tok in ('vcc','exec','m0','exec_lo','exec_hi','vcc_lo','vcc_hi'): return {('x', tok[:4].rstrip('_'))}
    return out
class Ins:
    def __init__(s, text):
        s.text = text
        t = text.split(';')[0].strip()
        s.label = t.endswith(':')
        s.directive = t.startswith('.') or t == ''
        s.op = '' if (s.label or s.directive) else t.split()[0]
        s.dst=set(); s.src=set(); s.kind='none'; s.ws=0; s.srcC=set(); s.dpp=False; s.lds=False; s.wide=False
        if not s.op: return
        s.ws = 1
        rest = t[len(s.op):].strip()
        ops = [o.strip() for o in rest.split(',')] if rest else []
        if ops:
            last = ops[-1].split()
            mods = last[1:]; ops[-1] = last[0]
        else: mods=[]
        s.mods = mods
        R = [regs_of(o) for o in ops]
        op = s.op
        if op == 's_nop': s.ws = int(ops[0])+1; s.kind='salu'; return
        if op.startswith('v_mfma'):
            s.kind='mfma'; s.dst=R[0]; s.src=R[1]|R[2]; s.srcC=R[3]
        elif op.startswith('v_'):
            s.kind='valu'; s.dst=set(R[0]); s.src=set().union(*R[1:]) if len(R)>1 else set()
            if op.startswith('v_cmpx'): s.dst.add(('x','exec'))
            if op.startswith('v_fmac') or op.startswith('v_pk_fmac') or 'dpp' in op or op.startswith('v_permlane') or op.startswith('v_writelane') or op.startswith('v_dot2c'): s.src|=R[0]
            if op.startswith('v_permlane'): s.dst|=R[1]
            if op.startswith('v_cndmask') and len(ops)==3: s.src.add(('x','vcc'))
            s.dpp = 'dpp' in op or op.startswith('v_permlane')
            s.trans = op.replace('_e32','').replace('_e64','') in TRANS
        elif op.startswith('ds_'):
            s.kind='ds'
            if 'read' in op or 'rtn' in op or 'permute' in op: s.dst=R[0]; s.src=set().union(*R[1:])
            else: s.src=set().union(*R)
        elif op.startswith('buffer_') or op.startswith('global_'):
            s.kind='vmem'
            if 'lds' in mods: s.lds=True; s.src=set().union(*R)
            elif 'load' in op: s.dst=R[0]; s.src=set().union(*R[1:])
            else:
                s.src=set().union(*R); s.wide = ('x3' in op or 'x4' in op); s.data=R[0]
        else:
            s.kind='salu'
            if ops and not op.startswith(('s_cmp','s_cbranch','s_branch','s_waitcnt','s_barrier','s_setprio','s_endpgm','s_sleep')):
                s.dst=R[0]; s.src=set().union(*R[1:]) if len(R)>1 else set()
            else: s.src=set().union(*R) if R else set()
def need(p, c):
    n=0
    V=lambda S:{r for r in S if r[0]=='v'}
    Sg=lambda S:{r for r in S if r[0]!='v'}
    if p.kind=='valu':
        if c.kind=='mfma' and V(p.dst)&(c.src|c.srcC): n=max(n,2)
        if c.kind=='valu':
            if p.trans and V(p.dst)&(c.src|c.dst): n=max(n,1)
            if c.dpp and V(p.dst)&c.src: n=max(n,2)
            if c.dpp and ('x','exec') in p.dst: n=max(n,5)
            if c.op.startswith(('v_readlane','v_readfirstlane','v_writelane')):
                if V(p.dst)&c.src: n=max(n,1)
                if ('x','exec') in p.dst or Sg(p.dst)&c.src: n=max(n,4)
            if Sg(p.dst)&c.src: n=max(n,2)
            if 'sdwa' in p.op and any(m.startswith('dst_sel') and 'DWORD' not in m for m in p.mods) and V(p.dst)&(c.src|c.dst): n=max(n,1)
        if c.kind=='vmem' and Sg(p.dst)&c.src: n=max(n,5)
    if p.kind=='mfma':
        L = 12 if '32x32' in p.op else 8
        if c.kind=='mfma':
            if p.dst&c.src: n=max(n,L)
            if p.dst&c.srcC and p.dst!=c.srcC: n=max(n,L)
            if p.dst&c.dst and not (p.dst==c.dst): n=max(n,L)
        elif c.kind in('valu','ds','vmem'):
            if p.dst&(c.src|c.dst): n=max(n,L)
            if c.kind=='valu' and p.srcC&c.dst: n=max(n,7)
    if p.kind=='salu' and ('x','m0') in p.dst and c.kind=='vmem' and c.lds: n=max(n,1)
    if p.kind=='vmem' and p.wide and c.kind in('valu','mfma') and p.data&c.dst: n=max(n,2)
    return n
def fix(lines):
    ins=[Ins(l) for l in lines]
    out=[]
    def short(hist,c):
        d=0; worst=0
        for p in reversed(hist):
            if d>=14: break
            if p.op:
                if p.op in('s_branch','s_endpgm') and p is not hist[-1]: break
                worst=max(worst, need(p,c)-d); d+=p.ws
        return worst
    for c in ins:
        if c.op:
            w=short(out,c)
            while w>0:
                k=min(w,8); out.append(Ins('s_nop %d'%(k-1))); w-=k
        out.append(c)
    lab={x.text.split(';')[0].strip()[:-1]:i for i,x in enumerate(out) if x.label}
    for i,x in enumerate(out):
        if x.op.startswith(('s_cbranch','s_branch')):
            tgt=x.text.split(';')[0].split()[-1]
            hist=out[max(0,i-20):i+1]; j=lab[tgt]; d=0
            while j<len(out) and d<14:
                c=out[j]
                if c.op:
                    dd=0
                    for p in reversed(hist):
                        if dd>=14: break
                        if p.op:
                            if need(p,c)-dd>0: raise Exception('hazard across branch %s: %s -> %s'%(x.text,p.text,c.text))
                            dd+=p.ws
                    hist=hist+[c]; d+=c.ws
                    if c.op in('s_branch','s_endpgm'): break
                j+=1
    return [('' if (x.label or x.directive) else '  ')+x.text for x in out]
class Asm:
    def __init__(s): s.l=[]
    def __call__(s,t):
        for x in t.split('\n'):
            x=x.strip()
            if x: s.l.append(x)
class Alloc:
    def __init__(s,p,start): s.p=p; s.n=start
    def __call__(s,cnt=1,al=1):
        s.n=(s.n+al-1)//al*al; r=s.n; s.n+=cnt; return r
def vr(b,n=1): return 'v%d'%b if n==1 else 'v[%d:%d]'%(b,b+n-1)
def sr(b,n=1): return 's%d'%b if n==1 else 's[%d:%d]'%(b,b+n-1)
```

```python
import re
TRANS = ('v_exp_f32','v_rcp_f32','v_log_f32','v_rsq_f32','v_sqrt_f32','v_exp_f16','v_rcp_f16')
def regs_of(tok):
    tok = tok.strip()
    out = set()
    m = re.fullmatch(r'-?\|?([vs])\[(\d+):(\d+)\]\|?', tok)
    if m:
        return {(m.group(1), i) for i in range(int(m.group(2)), int(m.group(3))+1)}
    m = re.fullmatch(r'-?\|?([vs])(\d+)\|?', tok)
    if m: return {(m.group(1), int(m.group(2)))}
    if tok in ('vcc','exec','m0','exec_lo','exec_hi','vcc_lo','vcc_hi'): return {('x', tok[:4].rstrip('_'))}
    return out
class Ins:
    def __init__(s, text):
        s.text = text
        t = text.split(';')[0].strip()
        s.label = t.endswith(':')
        s.directive = t.startswith('.') or t == ''
        s.op = '' if (s.label or s.directive) else t.split()[0]
        s.dst=set(); s.src=set(); s.kind='none'; s.ws=0; s.srcC=set(); s.dpp=False; s.lds=False; s.wide=False
        if not s.op: return
        s.ws = 1
        rest = t[len(s.op):].strip()
        ops = [o.strip() for o in rest.split(',')] if rest else []
        if ops:
            last = ops[-1].split()
            mods = last[1:]; ops[-1] = last[0]
        else: mods=[]
        s.mods = mods
        R = [regs_of(o) for o in ops]
        op = s.op
        if op == 's_nop': s.ws = int(ops[0])+1; s.kind='salu'; return
        if op.startswith('v_mfma'):
            s.kind='mfma'; s.dst=R[0]; s.src=R[1]|R[2]; s.srcC=R[3]
        elif op.startswith('v_'):
            s.kind='valu'; s.dst=set(R[0]); s.src=set().union(*R[1:]) if len(R)>1 else set()
            if op.startswith('v_cmpx'): s.dst.add(('x','exec'))
            if op.startswith('v_fmac') or op.startswith('v_pk_fmac') or 'dpp' in op or op.startswith('v_permlane') or op.startswith('v_writelane') or op.startswith('v_dot2c'): s.src|=R[0]
            if op.startswith('v_permlane'): s.dst|=R[1]
            if op.startswith('v_cndmask') and len(ops)==3: s.src.add(('x','vcc'))
            s.dpp = 'dpp' in op or op.startswith('v_permlane')
            s.trans = op.replace('_e32','').replace('_e64','').replace('_sdwa','') in TRANS
            if any('PRESERVE' in m for m in mods): s.src|=R[0]
        elif op.startswith('ds_'):
            s.kind='ds'
            if 'read' in op or 'rtn' in op or 'permute' in op: s.dst=R[0]; s.src=set().union(*R[1:])
            else: s.src=set().union(*R)
        elif op.startswith('buffer_') or op.startswith('global_'):
            s.kind='vmem'
            if 'lds' in mods: s.lds=True; s.src=set().union(*R)
            elif 'load' in op: s.dst=R[0]; s.src=set().union(*R[1:])
            else:
                s.src=set().union(*R); s.wide = ('x3' in op or 'x4' in op); s.data=R[0]
        else:
            s.kind='salu'
            if ops and not op.startswith(('s_cmp','s_cbranch','s_branch','s_waitcnt','s_barrier','s_setprio','s_endpgm','s_sleep')):
                s.dst=R[0]; s.src=set().union(*R[1:]) if len(R)>1 else set()
            else: s.src=set().union(*R) if R else set()
def need(p, c):
    n=0
    V=lambda S:{r for r in S if r[0]=='v'}
    Sg=lambda S:{r for r in S if r[0]!='v'}
    if p.kind=='valu':
        if c.kind=='mfma' and V(p.dst)&(c.src|c.srcC): n=max(n,2)
        if c.kind=='valu':
            if p.trans and V(p.dst)&(c.src|c.dst): n=max(n,1)
            if c.dpp and V(p.dst)&c.src: n=max(n,2)
            if c.dpp and ('x','exec') in p.dst: n=max(n,5)
            if c.op.startswith(('v_readlane','v_readfirstlane','v_writelane')):
                if V(p.dst)&c.src: n=max(n,1)
                if ('x','exec') in p.dst or Sg(p.dst)&c.src: n=max(n,4)
            if Sg(p.dst)&c.src: n=max(n,2)
            if 'sdwa' in p.op and any(m.startswith('dst_sel') and 'DWORD' not in m for m in p.mods) and V(p.dst)&(c.src|c.dst): n=max(n,1)
        if c.kind=='vmem' and Sg(p.dst)&c.src: n=max(n,5)
    if p.kind=='mfma':
        L = 12 if '32x32' in p.op else 8
        if c.kind=='mfma':
            if p.dst&c.src: n=max(n,L)
            if p.dst&c.srcC and p.dst!=c.srcC: n=max(n,L)
            if p.dst&c.dst and not (p.dst==c.dst): n=max(n,L)
        elif c.kind in('valu','ds','vmem'):
            if p.dst&(c.src|c.dst): n=max(n,L)
            if c.kind=='valu' and p.srcC&c.dst: n=max(n,7)
    if p.kind=='salu' and ('x','m0') in p.dst and c.kind=='vmem' and c.lds: n=max(n,1)
    if p.kind=='vmem' and p.wide and c.kind in('valu','mfma') and p.data&c.dst: n=max(n,2)
    return n
def fix(lines):
    ins=[Ins(l) for l in lines]
    out=[]
    def short(hist,c):
        d=0; worst=0
        for p in reversed(hist):
            if d>=14: break
            if p.op:
                if p.op in('s_branch','s_endpgm') and p is not hist[-1]: break
                worst=max(worst, need(p,c)-d); d+=p.ws
        return worst
    for c in ins:
        if c.op:
            w=short(out,c)
            while w>0:
                k=min(w,8); out.append(Ins('s_nop %d'%(k-1))); w-=k
        out.append(c)
    lab={x.text.split(';')[0].strip()[:-1]:i for i,x in enumerate(out) if x.label}
    for i,x in enumerate(out):
        if x.op.startswith(('s_cbranch','s_branch')):
            tgt=x.text.split(';')[0].split()[-1]
            hist=out[max(0,i-20):i+1]; j=lab[tgt]; d=0
            while j<len(out) and d<14:
                c=out[j]
                if c.op:
                    dd=0
                    for p in reversed(hist):
                        if dd>=14: break
                        if p.op:
                            if need(p,c)-dd>0: raise Exception('hazard across branch %s: %s -> %s'%(x.text,p.text,c.text))
                            dd+=p.ws
                    hist=hist+[c]; d+=c.ws
                    if c.op in('s_branch','s_endpgm'): break
                j+=1
    return [('' if (x.label or x.directive) else '  ')+x.text for x in out]
class Asm:
    def __init__(s): s.l=[]
    def __call__(s,t):
        for x in t.split('\n'):
            x=x.strip()
            if x: s.l.append(x)
class Alloc:
    def __init__(s,p,start): s.p=p; s.n=start
    def __call__(s,cnt=1,al=1):
        s.n=(s.n+al-1)//al*al; r=s.n; s.n+=cnt; return r
def vr(b,n=1): return 'v%d'%b if n==1 else 'v[%d:%d]'%(b,b+n-1)
def sr(b,n=1): return 's%d'%b if n==1 else 's[%d:%d]'%(b,b+n-1)
def lgkm(lines, loop=False):
    pend=[]
    def run(ls):
        nonlocal pend
        out=[]
        for l in ls:
            if l.startswith('@use'):
                touched=regs_of(l.split()[1]); c=None
            else:
                c=Ins(l); touched=c.src|c.srcC|c.dst
                m=re.search(r'lgkmcnt\((\d+)\)',l)
                if m:
                    n=int(m.group(1)); pend=pend[len(pend)-n:] if n else []
            last=-1
            for i,d in enumerate(pend):
                if d&touched: last=i
            if last>=0 and not (c is not None and c.kind=='ds' and not any(d&c.src for d in pend)):
                n=min(len(pend)-1-last,15)
                out.append('s_waitcnt lgkmcnt(%d)'%n); pend=pend[len(pend)-n:] if n else []
            if c is not None:
                out.append(l)
                if c.kind=='ds': pend.append(set(c.dst))
        return out
    o=run(lines)
    if loop: o=run(lines)
    return o
```
